```python
import torch

def _softmax(x, axis=-1):
    return torch.softmax(x, dim=axis)

def _gelu(x):
    return torch.nn.functional.gelu(x, approximate='tanh')

def _silu(x):
    return torch.nn.functional.silu(x)

def _sigmoid(x):
    return torch.sigmoid(x)

def _layernorm(x, axis=-1, eps=1e-05):
    m = x.mean(dim=axis, keepdim=True)
    v = x.var(dim=axis, keepdim=True, unbiased=False)
    return (x - m) / torch.sqrt(v + eps)

def _scatter_add(tgt, idx, src, axis=0):
    return tgt.clone().index_add_(axis, idx, src)

def _segment_sum(src, seg, n):
    out = torch.zeros((n,) + src.shape[1:], dtype=src.dtype)
    return out.index_add_(0, seg, src)

def _pad(x, pw):
    flat = tuple((v for pair in reversed(pw) for v in pair))
    return torch.nn.functional.pad(x, flat)
kernel_name = 'standalone__autoregressive_conv_wavernn__speech'

def setup_inputs():

    _w = lambda a: (lambda t: t.to(torch.bfloat16) if t.is_floating_point() else t)(torch.as_tensor(a))
    B, T, D, K = (2, 4000, 144, 31)
    return {'x': _w((lambda *s: torch.randn(*s, dtype=torch.bfloat16) * 0.1)(B, T, D)), 'w': _w((lambda *s: torch.randn(*s, dtype=torch.bfloat16) * 0.1)(K, D, 2 * D))}

def reference(x, w):
    B, T, D = x.shape
    K = w.shape[0]
    dil = 2
    pad = (K - 1) * dil
    xp = _pad(x, ((0, 0), (pad, 0), (0, 0)))
    h = torch.einsum('btd,de->bte', xp[:, 0:T, :], w[0])
    for i in range(1, K):
        h = h + torch.einsum('btd,de->bte', xp[:, i * dil:i * dil + T, :], w[i])
    f, g = (h[..., :D].clone(), h[..., D:].clone())
    return torch.tanh(f) * _sigmoid(g)
```

```python
import re

def regs(tok):
    tok = tok.strip()
    neg = re.match(r'^-?(?:abs\()?(.*?)\)?$', tok)
    tok = neg.group(1)
    m = re.match(r'^([vas])(\d+)$', tok)
    if m: return {(m.group(1), int(m.group(2)))}
    m = re.match(r'^([vas])\[(\d+):(\d+)\]$', tok)
    if m: return {(m.group(1), i) for i in range(int(m.group(2)), int(m.group(3)) + 1)}
    if tok in ('vcc',): return {('x', 'vcc')}
    if tok in ('exec',): return {('x', 'exec')}
    if tok == 'm0': return {('x', 'm0')}
    return set()

TRANS = ('v_exp_f32', 'v_log_f32', 'v_rcp_f32', 'v_rsq_f32', 'v_sqrt_f32', 'v_sin_f32', 'v_cos_f32')

class I:
    __slots__ = ('text', 'kind', 'defs', 'uses', 'mn', 'tag', 'cuses')
    def __init__(self, text, tag=None):
        self.text = text; self.tag = tag
        t = text.split(';')[0].strip()
        parts = t.split(None, 1)
        mn = parts[0]; self.mn = mn
        ops = []
        if len(parts) > 1:
            ops = [o.strip() for o in parts[1].split(',')]
            last = ops[-1].split()
            ops[-1] = last[0] if last else ''
        d = set(); u = set(); self.cuses = set()
        if mn.endswith(':') or mn.startswith('.'):
            k = 'label'
        elif mn.startswith('v_mfma'):
            k = 'mfma'; d = regs(ops[0]); u = regs(ops[1]) | regs(ops[2]) | regs(ops[3]); self.cuses = regs(ops[3])
        elif mn.startswith('ds_read') or mn.startswith('ds_bpermute'):
            k = 'dsr'; d = regs(ops[0]); u = set().union(*[regs(o) for o in ops[1:]])
        elif mn.startswith('ds_write'):
            k = 'dsw'; u = set().union(*[regs(o) for o in ops])
        elif mn.startswith('buffer_load') or mn.startswith('global_load'):
            k = 'vld'; d = regs(ops[0]); u = set().union(*[regs(o) for o in ops[1:]])
        elif mn.startswith('buffer_store') or mn.startswith('global_store'):
            k = 'vst'; u = set().union(*[regs(o) for o in ops])
        elif mn.startswith('s_load') or mn.startswith('s_memtime') or mn.startswith('s_memrealtime'):
            k = 'smem'; d = regs(ops[0]); u = set().union(*[regs(o) for o in ops[1:]]) if len(ops) > 1 else set()
        elif mn in ('s_waitcnt', 's_nop', 's_barrier', 's_endpgm', 's_sleep', 's_setprio') or mn.startswith('s_cbranch') or mn == 's_branch':
            k = 'ctl'
        elif mn.startswith('s_cmp') or mn.startswith('s_bitcmp'):
            k = 'salu'; u = set().union(*[regs(o) for o in ops])
        elif mn.startswith('s_'):
            k = 'salu'; d = regs(ops[0]); u = set().union(*[regs(o) for o in ops[1:]]) if len(ops) > 1 else set()
            if 'saveexec' in mn: d |= {('x', 'exec')}
        elif mn.startswith('v_cmp'):
            k = 'valu'; d = regs(ops[0]); u = set().union(*[regs(o) for o in ops[1:]])
        elif mn.startswith('v_readfirstlane') or mn.startswith('v_readlane'):
            k = 'valu'; d = regs(ops[0]); u = set().union(*[regs(o) for o in ops[1:]])
        elif mn.startswith('v_'):
            k = 'trans' if mn.replace('_e32', '').replace('_e64', '') in TRANS else 'valu'
            d = regs(ops[0]); u = set().union(*[regs(o) for o in ops[1:]])
            if mn.startswith('v_fmac') or mn.startswith('v_dot2c'): u |= d
            if mn.startswith('v_add_co') or mn.startswith('v_sub_co') or mn.startswith('v_addc_co'):
                d |= regs(ops[1])
            if mn.startswith('v_permlane'): d |= regs(ops[1]); u |= d
            if mn.startswith('v_cndmask') and len(ops) == 3: u |= {('x', 'vcc')}
        else:
            raise ValueError('unknown instr ' + text)
        self.kind = k; self.defs = d; self.uses = u

class Emitter:
    def __init__(self):
        self.out = []
        self.lds_q = []
        self.vm_q = []
        self.smem_pending = set()
        self.auto = True
        self.stats = {'wait': 0, 'nop': 0}
    def raw(self, text):
        self.out.append(I(text))
    def comment(self, text):
        i = I('.c'); i.text = '; ' + text; i.kind = 'comment'; self.out.append(i)
    def label(self, name):
        self.out.append(I(name + ':'))
    def states_since(self, pred, maxn):
        n = 0
        for ins in reversed(self.out):
            if ins.kind in ('comment', 'label'): continue
            if pred(ins): return n
            if ins.mn == 's_nop': n += int(ins.text.split()[1]) + 1
            else: n += 1
            if n >= maxn: return None
        return None
    def hazards(self, ins):
        need = 0
        def req(pred, k):
            nonlocal need
            s = self.states_since(pred, k)
            if s is not None: need = max(need, k - s)
        touch = ins.uses | ins.defs
        vec_user = ins.kind in ('valu', 'trans', 'dsr', 'dsw', 'vld', 'vst')
        if vec_user:
            req(lambda p: p.kind == 'mfma' and p.defs & touch, 8)
        if ins.kind == 'mfma':
            ab = ins.uses - ins.cuses
            req(lambda p: p.kind == 'mfma' and p.defs & ab, 8)
            req(lambda p: p.kind == 'mfma' and (p.defs & ins.cuses) and p.defs != ins.cuses, 6)
            req(lambda p: p.kind in ('valu', 'trans') and p.defs & ins.uses, 2)
            req(lambda p: p.kind in ('valu', 'trans') and ('x', 'exec') in p.defs, 4)
        if ins.kind in ('valu', 'trans'):
            req(lambda p: p.kind == 'mfma' and p.cuses & ins.defs, 3)
            req(lambda p: p.kind == 'trans' and p.defs & ins.uses, 1)
            su = {r for r in ins.uses if r[0] == 's' or r == ('x', 'vcc')}
            req(lambda p: p.kind == 'valu' and p.defs & su, 2)
            req(lambda p: p.kind == 'vst' and ('x4' in p.mn or 'x3' in p.mn) and p.uses & ins.defs, 2)
            if ins.mn.startswith('v_readfirstlane') or ins.mn.startswith('v_readlane'):
                req(lambda p: p.kind in ('valu', 'trans') and p.defs & ins.uses, 1)
            if ins.mn.startswith('v_permlane') or 'dpp' in ins.text or 'row_' in ins.text or 'quad_perm' in ins.text:
                req(lambda p: p.kind in ('valu', 'trans') and p.defs & ins.uses, 2)
            if 'sdwa' in ins.mn: pass
            req(lambda p: p.kind == 'valu' and 'sdwa' in p.mn and p.defs & touch, 1)
        if ins.kind in ('vld', 'vst'):
            su = {r for r in ins.uses if r[0] == 's'}
            req(lambda p: p.kind == 'valu' and p.defs & su, 5)
        if ins.kind in ('vld', 'dsr'):
            req(lambda p: p.kind == 'vst' and ('x4' in p.mn or 'x3' in p.mn) and p.uses & ins.defs, 1)
        if ins.kind == 'salu':
            req(lambda p: p.kind == 'valu' and p.defs & {r for r in ins.uses if r[0] == 's' or r[0] == 'x'}, 4)
        return need
    def waits(self, ins):
        touch = ins.uses | ins.defs
        lg = None; vm = None
        for k, d in enumerate(self.lds_q):
            if d & touch: lg = len(self.lds_q) - 1 - k
        for k, (d, t) in enumerate(self.vm_q):
            if d & touch: vm = len(self.vm_q) - 1 - k
        if self.smem_pending & touch: lg = 0
        return vm, lg
    def wait(self, vm=None, lg=None):
        parts = []
        if vm is not None:
            vm = min(vm, 63)
            if vm < len(self.vm_q):
                parts.append(f'vmcnt({vm})'); self.vm_q = self.vm_q[len(self.vm_q) - vm:] if vm else []
        if lg is not None:
            if self.smem_pending: lg = 0
            lg = min(lg, 15)
            if lg < len(self.lds_q) or self.smem_pending:
                parts.append(f'lgkmcnt({lg})'); self.lds_q = self.lds_q[len(self.lds_q) - lg:] if lg else []
                if lg == 0: self.smem_pending = set()
        if parts:
            self.out.append(I('s_waitcnt ' + ' '.join(parts))); self.stats['wait'] += 1
    def wait_tag(self, tag):
        idx = [k for k, (d, t) in enumerate(self.vm_q) if t == tag]
        if idx: self.wait(vm=len(self.vm_q) - 1 - idx[-1])
    def e(self, text, tag=None):
        ins = text if isinstance(text, I) else I(text, tag)
        if ins.kind in ('label', 'comment'):
            self.out.append(ins); return ins
        if self.auto:
            vm, lg = self.waits(ins)
            if vm is not None or lg is not None: self.wait(vm, lg)
            n = self.hazards(ins)
            if n > 0:
                self.out.append(I(f's_nop {n - 1}')); self.stats['nop'] += 1
        self.out.append(ins)
        if ins.kind in ('dsr', 'dsw'):
            self.lds_q.append(ins.defs)
        elif ins.kind in ('vld', 'vst'):
            self.vm_q.append((ins.defs, ins.tag))
            assert len(self.vm_q) <= 63, 'vmcnt overflow'
        elif ins.kind == 'smem':
            self.smem_pending |= ins.defs | {('x', 'smem')}
        return ins
    def many(self, lst):
        for t in lst: self.e(t)
    def text(self):
        L = []
        for i in self.out:
            if i.kind == 'label': L.append(i.text)
            else: L.append('    ' + i.text)
        return '\n'.join(L) + '\n'

def interleave(mfmas, fillers, per_gap=2):
    out = []; f = list(fillers); n = len(mfmas)
    for g, m in enumerate(mfmas):
        out.append(m)
        remaining_gaps = n - g
        cnt = 0
        quota = per_gap
        if len(f) > per_gap * remaining_gaps: quota = -(-len(f) // remaining_gaps)
        while f and cnt < quota and f[0][0] <= g:
            out.append(f.pop(0)[1]); cnt += 1
    out += [x[1] for x in f]
    return out

def interleave2(mfmas, streams, per_gap=2):
    S = [list(s) for s in streams]
    out = []; n = len(mfmas)
    for g, m in enumerate(mfmas):
        out.append(m)
        rem = sum(len(s) for s in S)
        quota = per_gap
        if rem > per_gap * (n - g): quota = -(-rem // (n - g))
        cnt = 0
        while cnt < quota:
            for s in S:
                if s and s[0][0] <= g:
                    out.append(s.pop(0)[1]); cnt += 1; break
            else:
                break
    for s in S: out += [x[1] for x in s]
    return out
```

```python
import sys
from asmlib import *

NAME = 'standalone__autoregressive_conv_wavernn__speech'
TAPB = 82944; WBYTES = 31 * TAPB; XB = 1152000
ARR = 87 * 576
D1, U1, D3 = 0, ARR, 2 * ARR
STG = 3 * ARR
LDS = STG + 4 * 2048
STAMP = '--stamp' in sys.argv

E = Emitter(); e = E.e
def v(a, n=1): return f'v{a}' if n == 1 else f'v[{a}:{a+n-1}]'
def a(a_, n=1): return f'a{a_}' if n == 1 else f'a[{a_}:{a_+n-1}]'
ACCK, ACCS, ACC2 = 0, 36, 72
WF = [108, 132]
TMP = 156
vWK, vWS, vWKt, vWSt, vStgW, vStgR = 188, 189, 190, 191, 192, 193
vB = {'K': 194, 'S': 195, 'U': 196}; vBt = {'K': 197, 'S': 198, 'U': 199}
vXO = [200, 201, 202, 203]; vXW, vXW2 = 204, 205
vOut, vXch, vXch2w, vXch2r = 206, 207, 208, 209
vT = 240
vTid, vLane = 250, 251
WIN = {'K': 0, 'S': 64, 'U': 128}; RAW = 192
sMask, sOff = 41, 42
stampn = [0]
def stamp():
    if not STAMP: return
    k = stampn[0]; stampn[0] += 1
    e(f's_memrealtime s[{60+2*k}:{61+2*k}]')

e('s_cmp_ge_u32 s2, 252'); E.raw('s_cbranch_scc1 L_end')
e('s_load_dwordx8 s[24:31], s[0:1], 0')
e('s_load_dwordx2 s[32:33], s[0:1], 32')
stamp()
e(f'v_mov_b32 {v(vTid)}, v0')
e('s_and_b32 s34, s2, 7'); e('s_lshr_b32 s35, s2, 3')
e('s_lshl_b32 s36, s34, 5'); e('s_add_u32 s36, s36, s35')
e('s_max_u32 s34, s34, 4'); e('s_sub_u32 s34, s34, 4'); e('s_sub_u32 s36, s36, s34')
e('s_mul_i32 s34, s36, 7282'); e('s_lshr_b32 s34, s34, 16')
e('s_mul_i32 s35, s34, 9'); e('s_sub_u32 s35, s36, s35')
e('s_cmp_ge_u32 s34, 14'); e('s_cselect_b32 s36, 1, 0')
e('s_mul_i32 s37, s36, 14'); e('s_sub_u32 s37, s34, s37')
e(f'v_mul_u32_u24 {v(vT)}, 1821, {v(vTid)}'); e(f'v_lshrrev_b32 {v(vT)}, 16, {v(vT)}')
e(f'v_mul_u32_u24 {v(vT+1)}, 36, {v(vT)}'); e(f'v_sub_u32 {v(vT+1)}, {v(vTid)}, {v(vT+1)}')
e(f'v_lshlrev_b32 {v(vT+1)}, 4, {v(vT+1)}')
e(f'v_mul_u32_u24 {v(vXO[0])}, {52*288}, {v(vT)}')
e(f'v_add_u32 {v(vXO[0])}, {v(vXO[0])}, {v(vT+1)}')
e(f's_mul_i32 s43, s37, {288*288}'); e(f's_sub_u32 s43, s43, {60*288}')
e(f'v_add_u32 {v(vXO[0])}, s43, {v(vXO[0])}')
e(f'v_add_u32 {v(vXO[1])}, {4*576}, {v(vXO[0])}')
e(f'v_add_u32 {v(vXO[2])}, {12*576}, {v(vXO[0])}')
e(f'v_add_u32 {v(vXO[3])}, {20*576}, {v(vXO[0])}')
e(f's_mul_i32 s43, s36, {XB}')
e('s_add_u32 s4, s24, s43'); e('s_addc_u32 s5, s25, 0'); e(f's_mov_b32 s6, {XB}'); e('s_mov_b32 s7, 0x20000')
for ep in range(27):
    grpi, base = (0, 0) if ep < 4 else ((1, 4) if ep < 12 else ((2, 12) if ep < 20 else (3, 20)))
    e(I(f'buffer_load_dwordx4 {v(4*ep,4)}, {v(vXO[grpi])}, s[4:7], 0 offen offset:{(ep-base)*576}', tag='x'))
stamp()
e('s_mov_b32 s8, s26'); e('s_mov_b32 s9, s27'); e(f's_mov_b32 s10, {WBYTES}'); e('s_mov_b32 s11, 0x20000')
e('s_add_u32 s12, s28, s43'); e('s_addc_u32 s13, s29, 0'); e(f's_mov_b32 s14, {XB}'); e('s_mov_b32 s15, 0x20000')
e(f's_mov_b32 s{sMask}, 0xffff0000')
e(f'v_lshrrev_b32 {v(vT+2)}, 6, {v(vTid)}')
e(f'v_readfirstlane_b32 s38, {v(vT+2)}')
e(f'v_and_b32 {v(vLane)}, 63, {v(vTid)}')
e('s_and_b32 s39, s38, 1'); e('s_lshr_b32 s40, s38, 1')
e(f'v_mul_u32_u24 {v(vXW)}, {13*576}, {v(vT)}'); e(f'v_add_u32 {v(vXW)}, {v(vXW)}, {v(vT+1)}')
e(f'v_add_u32 {v(vXW2)}, {D3}, {v(vXW)}')
e(f'v_cmp_gt_u32 s[44:45], 7, {v(vT)}')
e(f'v_cmp_gt_u32 s[46:47], 6, {v(vT)}')
e(f'v_lshrrev_b32 {v(vT+2)}, 1, {v(vLane)}')
e(f'v_and_b32 {v(vT+3)}, 0x13, {v(vT+2)}')
e(f'v_and_b32 {v(vT+4)}, 4, {v(vT+2)}'); e(f'v_lshlrev_b32 {v(vT+4)}, 1, {v(vT+4)}')
e(f'v_and_b32 {v(vT+5)}, 8, {v(vT+2)}'); e(f'v_lshrrev_b32 {v(vT+5)}, 1, {v(vT+5)}')
e(f'v_or3_b32 {v(vT+3)}, {v(vT+3)}, {v(vT+4)}, {v(vT+5)}')
e(f'v_and_b32 {v(vT+4)}, 1, {v(vLane)}'); e(f'v_lshlrev_b32 {v(vT+4)}, 4, {v(vT+4)}')
e('s_mul_i32 s43, s39, 288'); e('s_lshl_b32 s51, s35, 5'); e('s_add_u32 s43, s43, s51')
e(f's_mul_i32 s51, s40, {16*TAPB}'); e('s_add_u32 s43, s43, s51')
e(f's_mul_i32 s51, s40, {TAPB}'); e('s_add_u32 s52, s43, s51')
e(f's_sub_u32 s53, {TAPB}, s51'); e('s_add_u32 s53, s43, s53')
e(f'v_mul_u32_u24 {v(vT+5)}, 576, {v(vT+3)}'); e(f'v_add_u32 {v(vT+5)}, {v(vT+5)}, {v(vT+4)}')
e(f'v_add_u32 {v(vWK)}, s52, {v(vT+5)}'); e(f'v_add_u32 {v(vWS)}, s53, {v(vT+5)}')
e(f'v_cmp_gt_u32 vcc, 16, {v(vT+3)}')
e(f'v_mov_b32 {v(vT+6)}, {8*TAPB + 112*576}'); e(f'v_mov_b32 {v(vT+7)}, {128*576}')
e(f'v_cndmask_b32 {v(vT+6)}, {v(vT+6)}, {v(vT+7)}, vcc')
e(f'v_add_u32 {v(vWKt)}, {v(vWK)}, {v(vT+6)}'); e(f'v_add_u32 {v(vWSt)}, {v(vWS)}, {v(vT+6)}')
e('s_lshl_b32 s51, s38, 11'); e(f's_add_u32 s51, s51, {STG}')
e(f'v_lshlrev_b32 {v(vStgW)}, 4, {v(vLane)}'); e(f'v_add_u32 {v(vStgW)}, s51, {v(vStgW)}')
e(f'v_lshrrev_b32 {v(vT+2)}, 5, {v(vLane)}'); e(f'v_lshlrev_b32 {v(vT+2)}, 9, {v(vT+2)}')
e(f'v_bfe_u32 {v(vT+3)}, {v(vLane)}, 4, 1'); e(f'v_lshlrev_b32 {v(vT+3)}, 7, {v(vT+3)}')
e(f'v_and_b32 {v(vT+4)}, 15, {v(vLane)}'); e(f'v_lshlrev_b32 {v(vT+4)}, 3, {v(vT+4)}')
e(f'v_or3_b32 {v(vStgR)}, {v(vT+2)}, {v(vT+3)}, {v(vT+4)}'); e(f'v_add_u32 {v(vStgR)}, s51, {v(vStgR)}')
e(f'v_bfe_u32 {v(vT+2)}, {v(vLane)}, 1, 3')
e(f'v_and_b32 {v(vT+3)}, 1, {v(vLane)}')
e(f'v_lshrrev_b32 {v(vT+4)}, 4, {v(vLane)}')
e(f'v_mul_u32_u24 {v(vT+5)}, {9*576}, {v(vT+2)}')
e(f'v_mul_u32_u24 {v(vT+6)}, 288, {v(vT+3)}'); e(f'v_add_u32 {v(vT+5)}, {v(vT+5)}, {v(vT+6)}')
e(f'v_lshlrev_b32 {v(vT+6)}, 4, {v(vT+4)}'); e(f'v_add_u32 {v(vT+6)}, {v(vT+5)}, {v(vT+6)}')
e(f'v_lshrrev_b32 {v(vT+7)}, 5, {v(vLane)}'); e(f'v_mul_u32_u24 {v(vT+7)}, {4*576-32}, {v(vT+7)}')
e(f'v_add_u32 {v(vT+7)}, 256, {v(vT+7)}'); e(f'v_add_u32 {v(vT+7)}, {v(vT+6)}, {v(vT+7)}')
e(f's_mul_i32 s51, s40, {8*576}')
e(f's_mul_i32 s52, s40, {D3}'); e('s_add_u32 s52, s52, s51')
e(f's_mul_i32 s53, s40, {D3}'); e(f's_sub_u32 s53, {D3}, s53'); e('s_add_u32 s53, s53, s51')
e(f's_add_u32 s54, s51, {U1}')
for nm, s in (('K', 52), ('S', 53), ('U', 54)):
    e(f'v_add_u32 {v(vB[nm])}, s{s}, {v(vT+6)}'); e(f'v_add_u32 {v(vBt[nm])}, s{s}, {v(vT+7)}')
e(f'v_mul_u32_u24 {v(vOut)}, {36*288}, {v(vT+2)}'); e(f'v_mul_u32_u24 {v(vT+5)}, 288, {v(vT+3)}')
e(f'v_add_u32 {v(vOut)}, {v(vOut)}, {v(vT+5)}'); e(f'v_lshlrev_b32 {v(vT+5)}, 3, {v(vT+4)}'); e(f'v_add_u32 {v(vOut)}, {v(vOut)}, {v(vT+5)}')
e(f's_mul_i32 s51, s37, {288*288}'); e('s_mul_i32 s52, s40, 576'); e('s_add_u32 s51, s51, s52')
e('s_lshl_b32 s52, s35, 5'); e('s_add_u32 s51, s51, s52'); e(f's_mul_i32 s52, s39, {4*1152}'); e('s_add_u32 s51, s51, s52')
e(f'v_add_u32 {v(vOut)}, s51, {v(vOut)}')
e('s_cmp_eq_u32 s39, 0')
e('s_cselect_b32 s48, 0x4038aa3b, 0xbfb8aa3b'.replace(', 0xbfb8aa3b', ', s48')) if False else None
e('s_mov_b32 s48, 0x4038aa3b'); e('s_mov_b32 s51, 0xbfb8aa3b'); e('s_cselect_b32 s48, s48, s51')
e('s_cselect_b32 s49, -2.0, 1.0'); e('s_cselect_b32 s50, 1.0, 0')

def wload(n):
    step, h = divmod(n, 2)
    if step < 32: c, s = divmod(step, 8); so = s * 2 * TAPB + c * 32 * 576; vo = vWS if h else vWK
    else: s = step - 32; so = s * 2 * TAPB; vo = vWSt if h else vWKt
    L = []
    if h == 0: L.append(f's_mov_b32 s{sOff}, {so}')
    L.append(I(f'buffer_load_dwordx4 {a(RAW+4*(n%16),4)}, {v(vo)}, s[8:11], s{sOff} offen', tag='w'))
    return L
def stage(step, buf, sl):
    W = [f'ds_write_b128 {v(vStgW)}, {a(RAW+4*((2*step+h)%16),4)} offset:{1024*h}' for h in (0, 1)]
    b = WF[buf] + 12 * sl
    R = [f'ds_read_b64_tr_b16 {v(b+4*h+2*hh,2)}, {v(vStgR)} offset:{1024*h+256*hh}' for h in (0, 1) for hh in (0, 1)]
    return W, R
def ssum(buf, sl, t):
    b = WF[buf] + 12 * sl; L = []
    for d in range(4):
        q = t + 4 * (d % 2)
        L += [f'v_lshlrev_b32 {v(q)}, 16, {v(b+d)}', f'v_lshlrev_b32 {v(q+1)}, 16, {v(b+4+d)}',
              f'v_and_b32 {v(q+2)}, s{sMask}, {v(b+d)}', f'v_and_b32 {v(q+3)}, s{sMask}, {v(b+4+d)}',
              f'v_add_f32 {v(q)}, {v(q)}, {v(q+1)}', f'v_add_f32 {v(q+2)}, {v(q+2)}, {v(q+3)}',
              f'v_cvt_pk_bf16_f32 {v(b+8+d)}, {v(q)}, {v(q+2)}']
    return L

U0 = [108, 116]; U1f = 124; DD = 132; PK = 140
def unpack(dst, src):
    for d in range(4):
        e(f'v_lshlrev_b32 {v(dst+2*d)}, 16, {v(src+d)}'); e(f'v_and_b32 {v(dst+2*d+1)}, s{sMask}, {v(src+d)}')
def diff(pk, x, y):
    for d in range(4):
        e(f'v_pk_add_f32 {v(DD+2*d,2)}, {v(x+2*d,2)}, {v(y+2*d,2)} neg_lo:[0,1] neg_hi:[0,1]')
    for d in range(4):
        e(f'v_cvt_pk_bf16_f32 {v(pk+d)}, {v(DD+2*d)}, {v(DD+2*d+1)}')
e('s_mov_b64 exec, s[44:45]')
unpack(U0[0], 0)
stamp()
wq = list(range(16))
for ee in range(13):
    if ee == 9: e('s_mov_b64 exec, s[46:47]')
    cur, nxt = U0[ee % 2], U0[(ee + 1) % 2]
    pk = PK + 8 * (ee % 2)
    unpack(U1f, 4 * (2 * ee + 1))
    e(f'ds_write_b128 {v(vXW)}, {v(4*(2*ee+1),4)} offset:{U1 + ee*576}')
    diff(pk, cur, U1f)
    e(f'ds_write_b128 {v(vXW)}, {v(pk,4)} offset:{D1 + ee*576}')
    unpack(nxt, 4 * (2 * ee + 2))
    diff(pk + 4, nxt, U1f)
    e(f'ds_write_b128 {v(vXW2)}, {v(pk+4,4)} offset:{ee*576}')
    nw = 2 if ee >= 5 else 0
    if nw:
        e('s_mov_b64 exec, -1')
        for _ in range(nw):
            if wq: E.many(wload(wq.pop(0)))
        e('s_mov_b64 exec, s[44:45]' if ee < 9 else 's_mov_b64 exec, s[46:47]')
e('s_mov_b64 exec, -1')
assert not wq
stamp()
for sl in (0, 1):
    W, R = stage(sl, 0, sl); E.many(W); E.many(R)
for n in range(16, 20): E.many(wload(n))
E.many(ssum(0, 0, TMP)); E.many(ssum(0, 1, TMP))
E.wait(lg=0); e('s_barrier')
stamp()

def wread(X, run, jj):
    if run < 4: return f'ds_read_b128 {a(WIN[X]+4*jj,4)}, {v(vB[X])} offset:{jj*576 + run*64}'
    return f'ds_read_b128 {a(WIN[X]+4*jj,4)}, {v(vBt[X])} offset:{jj*576}'
for X in 'KSU':
    for jj in range(10): e(wread(X, 0, jj))
ACC = {'K': ACCK, 'S': ACCS, 'U': ACC2}; HO = {'K': 0, 'S': 4, 'U': 8}
NG = 18
for G in range(NG):
    run, g = (G // 4, G % 4) if G < 16 else (4, G - 16)
    lastg = (g == 3) or (G == 17)
    nfr = 16 if run < 4 else 12
    buf = G % 2
    M = []
    for X in 'KSU':
        for r in range(9):
            for u in (0, 1):
                c = '0' if (G == 0 and u == 0) else v(ACC[X] + 4 * r, 4)
                M.append(f'v_mfma_f32_16x16x32_bf16 {v(ACC[X]+4*r,4)}, {v(WF[buf]+12*u+HO[X],4)}, {a(WIN[X]+4*(2*g+u+r),4)}, {c}')
    A = []; B = []; C = []
    if G + 1 < NG:
        s0 = 2 * (G + 1)
        W0, R0 = stage(s0, 1 - buf, 0); W1, R1 = stage(s0 + 1, 1 - buf, 1)
        A += [(0, x) for x in W0 + R0 + W1 + R1]
        for n in range(2 * s0 + 16, 2 * s0 + 20):
            if n < 72: A += [(6, x) for x in wload(n)]
        C += [(13, x) for x in ssum(1 - buf, 0, TMP)] + [(13, x) for x in ssum(1 - buf, 1, TMP)]
    rd = []
    for xi, X in enumerate('KSU'):
        for jj in (2 * g + 10, 2 * g + 11):
            if jj < nfr: rd.append((8, wread(X, run, jj)))
    if run < 4:
        for xi, X in enumerate('KSU'):
            ms = range(0, 2) if not lastg else range(0, 10 - 2 * g)
            for m in ms: rd.append((18 * xi + 2 * m + 1, wread(X, run + 1, 2 * g + m)))
    rd.sort(key=lambda t: t[0]); B = rd
    E.many(interleave2(M, [A, B, C]))
    if G in (1, 3, 7, 11, 15): stamp()
stamp()
XCH = 0; XCH2 = 40960
e('s_mul_i32 s51, s38, 9216'); e(f'v_lshlrev_b32 {v(vT)}, 4, {v(vLane)}'); e(f'v_add_u32 {v(vXch)}, s51, {v(vT)}')
e('s_xor_b32 s52, s38, 2'); e('s_mul_i32 s52, s52, 9216'); e(f'v_add_u32 {v(vT+1)}, s52, {v(vT)}')
e(f's_mul_i32 s51, s38, 4608'); e(f's_add_u32 s51, s51, {XCH2}')
e(f'v_lshlrev_b32 {v(vT)}, 3, {v(vLane)}'); e(f'v_add_u32 {v(vXch2w)}, s51, {v(vT)}')
e('s_and_b32 s52, s38, 2'); e('s_mul_i32 s52, s52, 4608'); e('s_lshl_b32 s53, s39, 11'); e('s_add_u32 s52, s52, s53'); e(f's_add_u32 s52, s52, {XCH2}')
e(f'v_add_u32 {v(vXch2r)}, s52, {v(vT)}')
for k in range(36): e(f'v_add_f32 {v(ACCS+k)}, {v(ACCS+k)}, {v(ACC2+k)}')
e('s_barrier')
for r in range(9): e(f'ds_write_b128 {v(vXch)}, {v(ACCS+4*r,4)} offset:{1024*r}')
for k in range(36): e(f'v_add_f32 {v(ACCK+k)}, {v(ACCK+k)}, {v(ACC2+k)}')
E.wait(lg=0); e('s_barrier')
for r in range(9): e(f'ds_read_b128 {v(108+4*r,4)}, {v(vT+1)} offset:{1024*r}')
for r in range(9):
    y = ACCK + 4 * r
    for k in range(4): e(f'v_add_f32 {v(y+k)}, {v(y+k)}, {v(108+4*r+k)}')
    for k in range(4): e(f'v_mul_f32 {v(y+k)}, s48, {v(y+k)}')
    for k in range(4): e(f'v_exp_f32 {v(y+k)}, {v(y+k)}')
    for k in range(4): e(f'v_add_f32 {v(y+k)}, 1.0, {v(y+k)}')
    for k in range(4): e(f'v_rcp_f32 {v(y+k)}, {v(y+k)}')
    for k in range(4): e(f'v_mul_f32 {v(y+k)}, s49, {v(y+k)}')
    for k in range(4): e(f'v_add_f32 {v(y+k)}, s50, {v(y+k)}')
    e(f'v_cvt_pk_bf16_f32 {v(y)}, {v(y)}, {v(y+1)}'); e(f'v_cvt_pk_bf16_f32 {v(y+1)}, {v(y+2)}, {v(y+3)}')
    e(f'ds_write_b64 {v(vXch2w)}, {v(y,2)} offset:{512*r}')
E.wait(lg=0); e('s_barrier')
for r in range(5):
    e(f'ds_read_b64 {v(36+4*r,2)}, {v(vXch2r)} offset:{512*r}')
    e(f'ds_read_b64 {v(38+4*r,2)}, {v(vXch2r)} offset:{512*r+4608}')
e('s_movk_i32 s51, 4608')
for r in range(5):
    f = 36 + 4 * r; t = 60 + 8 * (r % 2)
    for d in (0, 1):
        e(f'v_lshlrev_b32 {v(t+4*d)}, 16, {v(f+d)}'); e(f'v_and_b32 {v(t+4*d+1)}, s{sMask}, {v(f+d)}')
        e(f'v_lshlrev_b32 {v(t+4*d+2)}, 16, {v(f+2+d)}'); e(f'v_and_b32 {v(t+4*d+3)}, s{sMask}, {v(f+2+d)}')
        e(f'v_mul_f32 {v(t+4*d)}, {v(t+4*d)}, {v(t+4*d+2)}'); e(f'v_mul_f32 {v(t+4*d+1)}, {v(t+4*d+1)}, {v(t+4*d+3)}')
        e(f'v_cvt_pk_bf16_f32 {v(f+d)}, {v(t+4*d)}, {v(t+4*d+1)}')
    if r < 4: e(f'buffer_store_dwordx2 {v(f,2)}, {v(vOut)}, s[12:15], 0 offen offset:{1152*r}')
    else: e(f'buffer_store_dwordx2 {v(f,2)}, {v(vOut)}, s[12:15], s51 offen')
if STAMP:
    stamp(); E.wait(vm=0); stamp()
    e('s_mov_b32 s16, s32'); e('s_mov_b32 s17, s33'); e('s_mov_b32 s18, 0x100000'); e('s_mov_b32 s19, 0x20000')
    e('s_lshl_b32 s51, s2, 2'); e('s_add_u32 s51, s51, s38'); e('s_lshl_b32 s51, s51, 7')
    E.wait(lg=0)
    for k in range(stampn[0]):
        e(f'v_mov_b32 {v(vT)}, s{60+2*k}'); e(f'v_mov_b32 {v(vT+1)}, {4*k}')
        e(f'buffer_store_dword {v(vT)}, {v(vT+1)}, s[16:19], s51 offen')
E.label('L_end')
E.raw('s_endpgm')

hdr = f'''; F(2,2) fast-FIR gated causal conv, generated by gen1.py
; @launch grid=(252,1,1) block=(256,1,1) lds={LDS}
.amdgcn_target "amdgcn-amd-amdhsa--gfx950"
.text
.globl {NAME}_kernel
.p2align 8
.type {NAME}_kernel,@function
{NAME}_kernel:
'''
ftr = f'''.section .rodata,"a"
.p2align 6
.amdhsa_kernel {NAME}_kernel
  .amdhsa_next_free_vgpr 512
  .amdhsa_next_free_sgpr 102
  .amdhsa_accum_offset 256
  .amdhsa_group_segment_fixed_size 0
  .amdhsa_kernarg_size 40
  .amdhsa_user_sgpr_count 2
  .amdhsa_user_sgpr_kernarg_segment_ptr 1
  .amdhsa_system_sgpr_workgroup_id_x 1
  .amdhsa_float_denorm_mode_32 3
.end_amdhsa_kernel
'''
out = [x for x in sys.argv[1:] if not x.startswith('--')]
open(out[0], 'w').write(hdr + E.text() + ftr)
print('instrs', len(E.out), E.stats, 'stamps', stampn[0], file=sys.stderr)
```
